```python
import torch

def _softmax(x, axis=-1):
    return torch.softmax(x, dim=axis)
def _gelu(x):
    return torch.nn.functional.gelu(x, approximate="tanh")
def _silu(x):
    return torch.nn.functional.silu(x)
def _sigmoid(x):
    return torch.sigmoid(x)
def _layernorm(x, axis=-1, eps=1e-5):
    m = x.mean(dim=axis, keepdim=True)
    v = x.var(dim=axis, keepdim=True, unbiased=False)
    return (x - m) / torch.sqrt(v + eps)
def _scatter_add(tgt, idx, src, axis=0):
    return tgt.clone().index_add_(axis, idx, src)
def _segment_sum(src, seg, n):
    out = torch.zeros((n,) + src.shape[1:], dtype=src.dtype)
    return out.index_add_(0, seg, src)
def _pad(x, pw):
    flat = tuple(v for pair in reversed(pw) for v in pair)
    return torch.nn.functional.pad(x, flat)

kernel_name = 'parallel_sum__mha_block__glu_gated_bilinear__prompt'

def setup_inputs():

    _w = (lambda a: (lambda t: t.to(torch.bfloat16) if t.is_floating_point() else t)(torch.as_tensor(a)))
    def _A_setup():
        B, S, D, H = 1, 2048, 1024, 32
        return {
            "x": _w((lambda *s: torch.randn(*s, dtype=torch.bfloat16) * 0.05)(B, S, D)),
            "wqkv": _w((lambda *s: torch.randn(*s, dtype=torch.bfloat16) * 0.05)(D, 3 * D)),
            "wo": _w((lambda *s: torch.randn(*s, dtype=torch.bfloat16) * 0.05)(D, D)),
        }
    _A_in = _A_setup()

    def _B_setup():
        B, S, D, F = 1, 2048, 1024, 3584
        return {
            "x": _w((lambda *s: torch.randn(*s, dtype=torch.bfloat16) * 0.05)(B, S, D)),
            "w_gate": _w((lambda *s: torch.randn(*s, dtype=torch.bfloat16) * 0.8)(D, F) * (D ** -0.5)),
            "w_up": _w((lambda *s: torch.randn(*s, dtype=torch.bfloat16) * 0.8)(D, F) * (D ** -0.5)),
            "w_down": _w((lambda *s: torch.randn(*s, dtype=torch.bfloat16) * 0.8)(F, D) * (F ** -0.5)),
        }
    _B_in = _B_setup()

    return {
        "A_x": _A_in["x"],
        "A_wqkv": _A_in["wqkv"],
        "A_wo": _A_in["wo"],
        "B_x": _B_in["x"],
        "B_w_gate": _B_in["w_gate"],
        "B_w_up": _B_in["w_up"],
        "B_w_down": _B_in["w_down"],
    }

def reference(A_x, A_wqkv, A_wo, B_x, B_w_gate, B_w_up, B_w_down):
    def _A_ref(x, wqkv, wo):
        B, S, D = x.shape
        H = 32
        Dh = D // H
        qkv = (lambda x, *d: x.permute(*d))((x @ wqkv).reshape(B, S, 3, H, Dh), 2, 0, 3, 1, 4)
        q, k, v = qkv[0], qkv[1], qkv[2]
        scores = torch.einsum("bhqd,bhkd->bhqk", q, k) * (Dh ** -0.5)
        p = _softmax(scores, axis=-1)
        o = torch.einsum("bhqk,bhkd->bhqd", p, v)
        return (lambda x, *d: x.permute(*d))(o, 0, 2, 1, 3).reshape(B, S, D) @ wo

    def _B_ref(x, w_gate, w_up, w_down):
        g = torch.einsum("bsd,df->bsf", x, w_gate)
        u = torch.einsum("bsd,df->bsf", x, w_up)
        h = g * u
        return torch.einsum("bsf,fd->bsd", h, w_down)

    x = A_x
    xn = _layernorm(x, axis=-1)
    return x + _A_ref(xn, A_wqkv, A_wo) + _B_ref(xn, B_w_gate, B_w_up, B_w_down)
```

```python
import re

class A:
    def __init__(self):
        self.L = []
    def __call__(self, s=""):
        for x in s.split("\n"):
            self.L.append(x if x.endswith(":") or x.startswith(".") or x.startswith(";") else "    " + x.strip())
    def label(self, n):
        self.L.append(n + ":")
    def text(self):
        return "\n".join(self.L) + "\n"

def vr(b, n=1, p="v"):
    return f"{p}{b}" if n == 1 else f"{p}[{b}:{b+n-1}]"
def ar(b, n=1): return vr(b, n, "a")
def sr(b, n=1): return vr(b, n, "s")

def srd(a, d, base, nbytes, off=None):
    if off is None:
        a(f"s_mov_b32 s{d}, s{base}")
        a(f"s_and_b32 s{d+1}, s{base+1}, 0xffff")
    else:
        a(f"s_add_u32 s{d}, s{base}, {off}")
        a(f"s_addc_u32 s{d+1}, s{base+1}, 0")
        a(f"s_and_b32 s{d+1}, s{d+1}, 0xffff")
    a(f"s_mov_b32 s{d+2}, {nbytes}")
    a(f"s_mov_b32 s{d+3}, 0x20000")

class Op:
    def __init__(self, text, kind="x", w=(), r=()):
        self.text, self.kind, self.w, self.r = text, kind, set(w), set(r)

def regs(p, b, n):
    return {f"{p}{i}" for i in range(b, b + n)}

class Waits:
    def __init__(self):
        self.ds = []
        self.vm = []
    def copy(self):
        o = Waits(); o.ds = list(self.ds); o.vm = list(self.vm); return o
    def need(self, q, r, mx):
        idx = -1
        for i, w in enumerate(q):
            if w & r: idx = i
        if idx < 0: return None
        n = len(q) - 1 - idx
        n = min(n, mx)
        del q[:len(q) - n]
        return n
    def emit(self, a, op):
        n1 = self.need(self.ds, op.r, 15)
        n2 = self.need(self.vm, op.r, 63)
        if n1 is not None or n2 is not None:
            s = "s_waitcnt"
            if n2 is not None: s += f" vmcnt({n2})"
            if n1 is not None: s += f" lgkmcnt({n1})"
            a(s)
        if op.text: a(op.text)
        if op.kind == "ds": self.ds.append(op.w)
        elif op.kind == "vm": self.vm.append(op.w)
    def drain(self, a, ds=True, vm=True):
        s = "s_waitcnt"
        if vm: s += " vmcnt(0)"; self.vm = []
        if ds: s += " lgkmcnt(0)"; self.ds = []
        a(s)

def kd(name, nv, acc, sg=102):
    return f""".amdhsa_kernel {name}
  .amdhsa_next_free_vgpr {nv}
  .amdhsa_next_free_sgpr {sg}
  .amdhsa_accum_offset {acc}
  .amdhsa_group_segment_fixed_size 0
  .amdhsa_kernarg_size 80
  .amdhsa_user_sgpr_count 2
  .amdhsa_user_sgpr_kernarg_segment_ptr 1
  .amdhsa_system_sgpr_workgroup_id_x 1
  .amdhsa_float_denorm_mode_32 3
.end_amdhsa_kernel
"""
def khead(name):
    return f".globl {name}\n.p2align 8\n.type {name},@function\n{name}:\n"

import os
STAMP = os.environ.get("STAMP", "0") == "1"
def stamp(a, i):
    if not STAMP: return
    a("s_memrealtime s[86:87]\ns_memtime s[100:101]\ns_waitcnt lgkmcnt(0)")
    a(f"s_mov_b32 s{88+i}, s86\ns_mov_b32 s{94+i}, s100")
def stamp_out(a, kidx, srdreg, wave_s, tmpv):
    if not STAMP: return
    a(f"s_lshl_b32 s86, s2, 2\ns_add_u32 s86, s86, s{wave_s}\ns_lshl_b32 s86, s86, 6\ns_add_u32 s86, s86, {(128<<20) + kidx*65536}")
    for i in range(12): a(f"v_mov_b32 v{tmpv+i}, s{88+i}")
    a(f"v_mov_b32 v{tmpv+12}, 0")
    for i in range(3): a(f"buffer_store_dwordx4 v[{tmpv+4*i}:{tmpv+4*i+3}], v{tmpv+12}, s[{srdreg}:{srdreg+3}], s86 offen offset:{16*i}")
```

```python
from asmlib import *
import struct
WS_Q = 4 << 20
WS_KV = 8 << 20
WS_A2 = 16 << 20
WS_SIZE = 1 << 28
M16 = "v_mfma_f32_16x16x32_bf16"
M32 = "v_mfma_f32_32x32x16_bf16"
ATT_LDS = 131072 + 64
VCUR, VNXT, VDMA, VKG, VST = 2, 3, 4, 5, 6
T = 8
ONE = 12
Q = {"A": 16, "B": 24}
K0, K1, V0, V1 = 32, 36, 40, 44
P = 48
L = {"A": 56, "B": 60}
S = {"A": 64, "B": 80}
NM = {"A": 96, "B": 112}
O = {"A": 128, "B": 144}
TMP = 160
S_KV, S_WS = 8, 12
S_WM, S_OFF, S_CNT, S_PASS, S_QO, S_OO = 16, 17, 18, 19, 20, 21

def unit(a, X, j, fill):
    Y = "B" if X == "A" else "A"
    e = lambda i: a(f"v_exp_f32 v{T + (i & 3)}, v{S[X] + i}")
    c = lambda i: a(f"v_cvt_pk_bf16_f32 v{P + i // 2}, v{T + (i & 3)}, v{T + ((i + 1) & 3)}")
    def m(s, t):
        a(t)
        for f in fill.get(s, []): a(f)
    m(1, f"{M32} {vr(S[Y],16)}, {vr(K0,4)}, {vr(Q[Y],4)}, {vr(NM[Y],16)}")
    e(0); c(14); e(1); e(2)
    m(2, f"{M32} {vr(S[Y],16)}, {vr(K1,4)}, {vr(Q[Y]+4,4)}, {vr(S[Y],16)}")
    c(0); e(3); e(4); c(2)
    m(3, f"{M32} {vr(O[Y],16)}, {vr(V1,4)}, {vr(P+4,4)}, {vr(O[Y],16)}")
    e(5); e(6); c(4); e(7)
    m(4, f"{M16} {vr(L[Y],4)}, {vr(ONE,4)}, {vr(P+4,4)}, {vr(L[Y],4)}")
    e(8); c(6); e(9); e(10)
    m(5, f"{M32} {vr(O[X],16)}, {vr(V0,4)}, {vr(P,4)}, {vr(O[X],16)}")
    c(8); e(11); e(12); c(10)
    m(6, f"{M16} {vr(L[X],4)}, {vr(ONE,4)}, {vr(P,4)}, {vr(L[X],4)}")
    e(13); e(14); c(12); e(15)

def rd(dst, jj, off):
    r = VCUR if jj < 16 else VNXT
    return f"ds_read_b128 {vr(dst,4)}, v{r} offset:{(jj & 15) * 4096 + off}"

def rowmax(a, X, dst, first):
    s = S[X]
    if first:
        a(f"v_max3_f32 v{dst}, v{s}, v{s+1}, v{s+2}"); rest = list(range(3, 16)) + [15]
    else: rest = list(range(16))
    for i in range(0, len(rest), 2): a(f"v_max3_f32 v{dst}, v{dst}, v{s+rest[i]}, v{s+rest[i+1]}")

def qk_plain(a):
    for X in "AB":
        a(f"{M32} {vr(S[X],16)}, {vr(K0,4)}, {vr(Q[X],4)}, 0")
        a(f"{M32} {vr(S[X],16)}, {vr(K1,4)}, {vr(Q[X]+4,4)}, {vr(S[X],16)}")

def set_nm(a):
    a(f"v_mov_b32 v{TMP+2}, v{TMP}\nv_mov_b32 v{TMP+3}, v{TMP+1}\ns_nop 1")
    a(f"v_permlane32_swap_b32 v{TMP}, v{TMP+2}\nv_permlane32_swap_b32 v{TMP+1}, v{TMP+3}\ns_nop 1")
    a(f"v_max_f32 v{TMP}, v{TMP}, v{TMP+2}\nv_max_f32 v{TMP+1}, v{TMP+1}, v{TMP+3}")
    for i, X in enumerate("AB"):
        for r in range(16): a(f"v_sub_f32 v{NM[X]+r}, 0, v{TMP+i}")

def gen_att():
    a = A()
    a(khead("att_kernel"))
    a("s_cmp_ge_u32 s2, 256")
    a("s_cbranch_scc1 L_att_end")
    stamp(a, 0)
    a("s_load_dwordx2 s[4:5], s[0:1], 72")
    a("v_lshrrev_b32 v1, 6, v0")
    a("v_and_b32 v0, 63, v0")
    a("s_and_b32 s22, s2, 7\ns_lshl_b32 s22, s22, 2\ns_bfe_u32 s23, s2, 0x20003\ns_add_u32 s22, s22, s23")
    a("v_readfirstlane_b32 s24, v1")
    a("s_lshr_b32 s25, s2, 5")
    a("v_bfe_u32 v7, v0, 3, 1\nv_lshlrev_b32 v7, 10, v7")
    a("v_lshrrev_b32 v8, 5, v0\nv_lshl_add_u32 v7, v8, 8, v7")
    a("v_bfe_u32 v9, v0, 4, 1\nv_lshl_add_u32 v7, v9, 7, v7")
    a(f"v_and_b32 v10, 7, v0\nv_lshl_add_u32 v{VKG}, v10, 4, v7")
    a("v_lshlrev_b32 v7, 10, v9\nv_lshl_add_u32 v7, v8, 8, v7")
    a(f"v_and_b32 v10, 15, v0\nv_lshl_add_u32 v{VST}, v10, 4, v7")
    a(f"s_lshl_b32 s26, s24, 10\nv_lshlrev_b32 v7, 4, v0\nv_add_u32 v{VDMA}, s26, v7")
    a("v_bfe_u32 v10, v0, 2, 1\nv_cmp_eq_u32 vcc, v9, v10\nv_mov_b32 v7, 0x3f803f80\ns_nop 0")
    for r in range(4): a(f"v_cndmask_b32 v{ONE+r}, 0, v7, vcc")
    a(f"s_lshl_b32 s27, s22, 17\ns_lshl_b32 s28, s25, 14\ns_add_u32 s27, s27, s28\ns_lshl_b32 s28, s24, 12\ns_add_u32 s27, s27, s28\ns_add_u32 s{S_QO}, s27, {WS_Q}")
    a("s_lshl_b32 s27, s25, 1\ns_lshr_b32 s28, s24, 1\ns_add_u32 s27, s27, s28\ns_mul_i32 s27, s27, 144\ns_add_u32 s27, s27, s22\ns_add_u32 s27, s27, 112")
    a(f"s_lshl_b32 s27, s27, 1\ns_and_b32 s28, s24, 1\ns_add_u32 s27, s27, s28\ns_lshl_b32 s27, s27, 12\ns_add_u32 s{S_OO}, s27, {WS_A2}")
    a(f"s_lshl_b32 s27, s22, 18\ns_add_u32 s27, s27, {WS_KV}")
    a(f"s_mov_b32 s{S_PASS}, 0")
    a("s_waitcnt lgkmcnt(0)")
    srd(a, S_KV, 4, 1 << 18, "s27")
    srd(a, S_WS, 4, WS_SIZE)
    for i, X in enumerate("AB"):
        for t in range(2):
            a(f"buffer_load_dwordx4 {vr(Q[X]+4*t,4)}, v{VST}, s[{S_WS}:{S_WS+3}], s{S_QO} offen offset:{i*2048 + t*512}")
    a.label("L_att_restart")
    a(f"buffer_load_dwordx4 {vr(K0,4)}, v{VKG}, s[{S_KV}:{S_KV+3}], 0 offen")
    a(f"buffer_load_dwordx4 {vr(K1,4)}, v{VKG}, s[{S_KV}:{S_KV+3}], 0 offen offset:512")
    a(f"s_mov_b32 s{S_OFF}, 0")
    for j in range(16):
        a(f"s_add_u32 m0, s26, {j*4096}")
        a("s_nop 0")
        a(f"buffer_load_dwordx4 v{VDMA}, s[{S_KV}:{S_KV+3}], s{S_OFF} offen lds")
        a(f"s_add_u32 s{S_OFF}, s{S_OFF}, 4096")
    a(f"s_add_u32 s{S_WM}, s26, 65536")
    a(f"v_mov_b32 v{VCUR}, v{VKG}\nv_add_u32 v{VNXT}, 0x10000, v{VKG}")
    for r in list(range(O["A"], O["A"] + 32)) + list(range(P, P + 16)) + list(range(V1, V1 + 4)) + [T + 2, T + 3]:
        a(f"v_mov_b32 v{r}, 0")
    a("s_waitcnt vmcnt(16)")
    stamp(a, 1)
    a(f"s_cmp_lg_u32 s{S_PASS}, 0\ns_cbranch_scc1 L_att_havemax")
    qk_plain(a)
    a("s_nop 9")
    rowmax(a, "A", TMP, True); a("s_nop 1"); rowmax(a, "B", TMP + 1, True)
    set_nm(a)
    a.label("L_att_havemax")
    a(f"{M32} {vr(S['A'],16)}, {vr(K0,4)}, {vr(Q['A'],4)}, {vr(NM['A'],16)}")
    a(f"{M32} {vr(S['A'],16)}, {vr(K1,4)}, {vr(Q['A']+4,4)}, {vr(S['A'],16)}")
    a("s_waitcnt vmcnt(8)\ns_barrier")
    stamp(a, 2)
    a(rd(V0, 0, 2048))
    a(f"s_mov_b32 s{S_CNT}, 4\ns_nop 7")
    a(".p2align 6")
    a.label("L_att_loop")
    for jj in range(16):
        fa = {1: [rd(K0, jj + 1, 0)], 2: [rd(K1, jj + 1, 512)], 3: [rd(V1, jj, 2560)], 4: ["s_waitcnt lgkmcnt(3)"],
              5: [f"s_add_u32 m0, s{S_WM}, {jj*4096}"], 6: ["s_waitcnt lgkmcnt(1)"]}
        fb = {1: [f"buffer_load_dwordx4 v{VDMA}, s[{S_KV}:{S_KV+3}], s{S_OFF} offen lds"], 2: ["s_waitcnt lgkmcnt(0)"],
              3: [f"s_add_u32 s{S_OFF}, s{S_OFF}, 4096"], 5: [rd(V0, jj + 1, 2048)]}
        if jj & 7 == 6: fb[4] = ["s_waitcnt vmcnt(7)"]; fb[6] = ["s_barrier"]
        if jj == 13: fb[4] = [f"s_sub_u32 s{S_CNT}, s{S_CNT}, 1"]
        if jj == 15: fb[4] = [f"s_xor_b32 s{S_WM}, s{S_WM}, 65536"]; fb[6] = [f"s_cmp_lg_u32 s{S_CNT}, 0"]
        unit(a, "A", jj, fa); unit(a, "B", jj, fb)
    a(f"v_swap_b32 v{VCUR}, v{VNXT}")
    a("s_cbranch_scc1 L_att_loop")
    stamp(a, 3)
    a(f"v_cvt_pk_bf16_f32 v{P+7}, v{T+2}, v{T+3}\ns_nop 1")
    a(f"{M32} {vr(O['B'],16)}, {vr(V1,4)}, {vr(P+4,4)}, {vr(O['B'],16)}")
    a(f"{M16} {vr(L['B'],4)}, {vr(ONE,4)}, {vr(P+4,4)}, {vr(L['B'],4)}")
    a(f"s_waitcnt vmcnt(0)\ns_cmp_lg_u32 s{S_PASS}, 0\ns_cbranch_scc1 L_att_out")
    a(f"v_mov_b32 v{TMP}, 0")
    for r in range(16): a(f"v_fmac_f32 v{TMP}, 0, v{O['A']+r}")
    for r in range(16): a(f"v_fmac_f32 v{TMP}, 0, v{O['B']+r}")
    a(f"v_max_f32 v{TMP+1}, v{L['A']}, v{L['B']}")
    a(f"v_fmac_f32 v{TMP}, 0, v{L['A']}\nv_fmac_f32 v{TMP}, 0, v{L['B']}")
    a(f"v_add_f32 v{TMP}, v{TMP}, v{TMP+1}")
    a(f"v_cmp_nge_f32 vcc, 0x53800000, v{TMP}")
    a("s_lshl_b32 s27, s24, 2\ns_add_u32 s27, s27, 131072")
    a(f"s_or_b32 s28, vcc_lo, vcc_hi\nv_mov_b32 v{TMP+2}, s27\nv_mov_b32 v{TMP+3}, s28\nv_mov_b32 v{TMP+4}, 131072")
    a(f"ds_write_b32 v{TMP+2}, v{TMP+3}")
    a("s_waitcnt vmcnt(0) lgkmcnt(0)\ns_barrier")
    a(f"ds_read_b128 {vr(TMP+8,4)}, v{TMP+4}")
    a("s_waitcnt lgkmcnt(0)")
    a(f"v_or3_b32 v{TMP+8}, v{TMP+8}, v{TMP+9}, v{TMP+10}\nv_or_b32 v{TMP+8}, v{TMP+8}, v{TMP+11}\ns_nop 0")
    a(f"v_readfirstlane_b32 s28, v{TMP+8}")
    a("s_cmp_lg_u32 s28, 0\ns_cbranch_scc1 L_att_fallback")
    a.label("L_att_out")
    a("s_nop 7\ns_nop 3")
    for i, X in enumerate("AB"):
        a(f"v_rcp_f32 v{TMP}, v{L[X]}\ns_nop 0")
        for r in range(16): a(f"v_mul_f32 v{O[X]+r}, v{O[X]+r}, v{TMP}")
        for r in range(8): a(f"v_cvt_pk_bf16_f32 v{S[X]+r}, v{O[X]+2*r}, v{O[X]+2*r+1}")
        for s in range(2):
            a(f"buffer_store_dwordx4 {vr(S[X]+4*s,4)}, v{VST}, s[{S_WS}:{S_WS+3}], s{S_OO} offen offset:{i*2048 + s*512}")
    stamp(a, 4)
    if STAMP: a("s_waitcnt vmcnt(0)")
    stamp(a, 5)
    stamp_out(a, 2, S_WS, 24, 16)
    a.label("L_att_end")
    a("s_endpgm")
    a.label("L_att_fallback")
    a(f"s_mov_b32 s{S_PASS}, 1\ns_mov_b32 s{S_OFF}, 0")
    a(f"v_mov_b32 v{TMP}, 0xff800000\nv_mov_b32 v{TMP+1}, 0xff800000")
    a.label("L_att_fb_loop")
    a(f"buffer_load_dwordx4 {vr(K0,4)}, v{VKG}, s[{S_KV}:{S_KV+3}], s{S_OFF} offen")
    a(f"buffer_load_dwordx4 {vr(K1,4)}, v{VKG}, s[{S_KV}:{S_KV+3}], s{S_OFF} offen offset:512")
    a("s_waitcnt vmcnt(0)")
    qk_plain(a)
    a("s_nop 9")
    rowmax(a, "A", TMP, False); a("s_nop 1"); rowmax(a, "B", TMP + 1, False)
    a(f"s_add_u32 s{S_OFF}, s{S_OFF}, 4096\ns_cmp_lt_u32 s{S_OFF}, {1<<18}\ns_cbranch_scc1 L_att_fb_loop")
    set_nm(a)
    a("s_branch L_att_restart")
    return a.text(), kd("att_kernel", 176, 176)
```

```python
from asmlib import *
WS_A2 = 16 << 20
WS_SIZE = 1 << 28
M16 = "v_mfma_f32_16x16x32_bf16"
G2_LDS = 4 * 24576
WF, XR, AR = 16, 48, 64
S_WS, S_WD, S_WO, S_X, S_O = 8, 12, 16, 20, 24
S_AO, S_WOFF, S_LW = 28, 29, 30
NS = 36
def loads(i):
    L = []
    sl = i % 6
    srdw = S_WD if i < 28 else S_WO
    pre = []
    if i == 28: pre.append(f"s_mov_b32 s{S_WOFF}, s31")
    for j in range(4):
        L.append((pre + [f"s_add_u32 m0, s{S_LW}, {sl*4096 + j*1024}"], Op(f"buffer_load_dwordx4 v{8+j}, s[{srdw}:{srdw+3}], s{S_WOFF} offen lds", "vm", {f"W{i}"})))
        pre = []
    for mb in range(8):
        d = AR + sl * 32 + mb * 4
        pre = []
        if mb == 0: pre = [f"s_add_u32 s{S_WOFF}, s{S_WOFF}, {128*2048}", f"s_add_u32 s{S_AO}, s{S_AO}, 32768"]
        L.append((pre, Op(f"buffer_load_dwordx4 {vr(d,4)}, v{2 + (mb>>2)}, s[{S_WS}:{S_WS+3}], s{S_AO} offen offset:{(mb&3)*1024}", "vm", regs("v", d, 4))))
    return L
def wreads(i):
    L = []
    for nb in range(4):
        for t in range(2):
            d = WF + (i & 1) * 16 + nb * 4 + t * 2
            L.append(Op(f"ds_read_b64_tr_b16 v[{d}:{d+1}], v{4+nb} offset:{(i%6)*4096 + t*2048}", "ds", regs("v", d, 2), {f"W{i}"}))
    return L

def gen_g2():
    a = A()
    a(khead("g2_kernel"))
    a("s_cmp_ge_u32 s2, 256")
    a("s_cbranch_scc1 L_g2_end")
    stamp(a, 0)
    a("s_load_dwordx2 s[40:41], s[0:1], 0")
    a("s_load_dwordx2 s[42:43], s[0:1], 16")
    a("s_load_dwordx4 s[44:47], s[0:1], 48")
    a("s_load_dwordx2 s[48:49], s[0:1], 72")
    a("v_lshrrev_b32 v1, 6, v0\nv_and_b32 v0, 63, v0")
    a("s_lshr_b32 s51, s2, 3")
    a("v_readfirstlane_b32 s50, v1")
    a("s_bfe_u32 s52, s2, 0x20001\ns_lshl_b32 s52, s52, 2\ns_and_b32 s53, s51, 3\ns_add_u32 s52, s52, s53")
    a("s_and_b32 s53, s2, 1\ns_lshl_b32 s53, s53, 3\ns_lshr_b32 s54, s51, 2\ns_add_u32 s53, s53, s54")
    a(f"s_mul_i32 s{S_AO}, s52, 144\ns_add_u32 s{S_AO}, s{S_AO}, s50\ns_lshl_b32 s{S_AO}, s{S_AO}, 13\ns_add_u32 s{S_AO}, s{S_AO}, {WS_A2 - 32768}")
    a(f"s_lshl_b32 s31, s50, 16\ns_lshl_b32 s54, s53, 7\ns_add_u32 s31, s31, s54\ns_mov_b32 s{S_WOFF}, s31")
    a(f"s_mul_i32 s{S_LW}, s50, 24576")
    a("v_lshlrev_b32 v2, 4, v0\nv_add_u32 v3, 0x1000, v2")
    a("v_lshrrev_b32 v12, 3, v0\nv_lshrrev_b32 v13, 4, v0\nv_lshlrev_b32 v14, 1, v13\nv_and_b32 v15, 7, v0\nv_xor_b32 v14, v14, v15\nv_lshlrev_b32 v14, 4, v14")
    a("v_lshl_add_u32 v8, v12, 11, v14")
    for j in range(1, 4): a(f"v_add_u32 v{8+j}, {j*8*2048}, v8")
    a("v_lshrrev_b32 v12, 2, v0\nv_bfe_u32 v14, v0, 3, 2\nv_lshlrev_b32 v14, 5, v14\nv_lshl_add_u32 v14, v12, 7, v14")
    a(f"v_and_b32 v15, 3, v0\nv_lshl_add_u32 v14, v15, 3, v14\nv_add_u32 v4, s{S_LW}, v14")
    for nb in range(1, 4): a(f"v_xor_b32 v{4+nb}, {nb*32}, v4")
    a("s_lshl_b32 s55, s52, 7\ns_lshl_b32 s56, s50, 5\ns_add_u32 s55, s55, s56\ns_lshl_b32 s55, s55, 11\ns_add_u32 s55, s55, s54\ns_add_u32 s56, s55, 32768")
    a("v_and_b32 v12, 15, v0\nv_lshlrev_b32 v12, 11, v12\nv_lshl_add_u32 v12, v13, 3, v12")
    a("s_waitcnt lgkmcnt(0)")
    srd(a, S_WS, 48, WS_SIZE); srd(a, S_WD, 44, 7 << 20); srd(a, S_WO, 42, 2 << 20); srd(a, S_X, 40, 4 << 20); srd(a, S_O, 46, 4 << 20)
    wt = Waits()
    zi = 0
    for i in range(5):
        for pre, op in loads(i):
            for p in pre: a(p)
            for _ in range(3 if zi < 126 else 1):
                a(f"v_accvgpr_write_b32 a{min(zi,127)}, 0"); zi += 1
            wt.emit(a, op)
    stamp(a, 1)
    for op in wreads(0): wt.emit(a, op)
    stamp(a, 2)
    for i in range(NS):
        fill = [[] for _ in range(32)]
        if i + 1 < NS:
            for j, op in enumerate(wreads(i + 1)): fill[4 * j + 1].append(op)
        if i + 5 < NS:
            pos = [2, 4, 7, 10, 12, 15, 18, 20, 23, 26, 28, 31]
            for j, (pre, op) in enumerate(loads(i + 5)):
                for p in pre: fill[pos[j] - 1].append(Op(p))
                fill[pos[j]].append(op)
        if i == NS - 5:
            for h in range(2):
                for nb in range(4):
                    d = XR + h * 8 + nb * 2
                    fill[h * 16 + nb * 4 + 2].append(Op(f"buffer_load_dwordx2 v[{d}:{d+1}], v12, s[{S_X}:{S_X+3}], s{55+h} offen offset:{nb*32}", "vm", regs("v", d, 2)))
        idx = 0
        for mb in range(8):
            for n_ in range(4):
                nb = n_ if mb % 2 == 0 else 3 - n_
                c = (mb * 4 + nb) * 4; w = WF + (i & 1) * 16 + nb * 4; x = AR + (i % 6) * 32 + mb * 4
                wt.emit(a, Op(f"{M16} {ar(c,4)}, {vr(w,4)}, {vr(x,4)}, {ar(c,4)}", r=regs("v", w, 4) | regs("v", x, 4)))
                for f in fill[idx]: wt.emit(a, f)
                idx += 1
    stamp(a, 3)
    a("s_nop 7")
    a(f"v_add_u32 v13, s{S_LW}, v2")
    for w in range(4):
        a(f"s_cmp_eq_u32 s50, {w}\ns_cbranch_scc0 L_g2_w{w}")
        for k in range(3):
            d = (w + 1 + k) & 3
            for j in range(8): a(f"ds_write_b128 v13, {ar(d*32 + j*4, 4)} offset:{k*8192 + j*1024}")
        for j in range(32): a(f"v_accvgpr_read_b32 v{AR+j}, a{w*32+j}")
        a.label(f"L_g2_w{w}")
    for k in range(3):
        a(f"s_sub_u32 s57, s50, {1+k}\ns_and_b32 s57, s57, 3\ns_mul_i32 s57, s57, 24576\nv_add_u32 v{4+k}, s57, v2")
    a("s_waitcnt vmcnt(0) lgkmcnt(0)\ns_barrier")
    wt = Waits()
    for j in range(8):
        for k in range(3):
            d = AR + 32 + (j * 3 + k) * 4
            wt.emit(a, Op(f"ds_read_b128 {vr(d,4)}, v{4+k} offset:{k*8192 + j*1024}", "ds", regs("v", d, 4)))
        if j == 3: pass
    a("s_mov_b32 s57, 0xffff0000")
    for j in range(8):
        c = AR + j * 4; p = AR + 32 + j * 12; x = XR + j * 2
        a(f"v_lshlrev_b32 v16, 16, v{x}\nv_and_b32 v17, s57, v{x}\nv_lshlrev_b32 v18, 16, v{x+1}\nv_and_b32 v19, s57, v{x+1}")
        for h in range(2): a(f"v_pk_add_f32 v[{c+2*h}:{c+2*h+1}], v[{c+2*h}:{c+2*h+1}], v[{16+2*h}:{17+2*h}]")
        wt.emit(a, Op("", r=regs("v", p, 12)))
        for h in range(2): a(f"v_pk_add_f32 v[{p+2*h}:{p+2*h+1}], v[{p+2*h}:{p+2*h+1}], v[{p+4+2*h}:{p+5+2*h}]")
        for h in range(2): a(f"v_pk_add_f32 v[{c+2*h}:{c+2*h+1}], v[{c+2*h}:{c+2*h+1}], v[{p+8+2*h}:{p+9+2*h}]")
        for h in range(2): a(f"v_pk_add_f32 v[{c+2*h}:{c+2*h+1}], v[{c+2*h}:{c+2*h+1}], v[{p+2*h}:{p+2*h+1}]")
        a(f"v_cvt_pk_bf16_f32 v{x}, v{c}, v{c+1}\nv_cvt_pk_bf16_f32 v{x+1}, v{c+2}, v{c+3}")
        a(f"buffer_store_dwordx2 v[{x}:{x+1}], v12, s[{S_O}:{S_O+3}], s{55 + (j>>2)} offen offset:{(j&3)*32}")
    stamp(a, 4)
    if STAMP: a("s_waitcnt vmcnt(0)")
    stamp(a, 5)
    stamp_out(a, 3, S_WS, 50, 16)
    a.label("L_g2_end")
    a("s_endpgm")
    return a.text(), kd("g2_kernel", 384, 256)
```

```python
import sys, math, struct
sys.path.insert(0, "gen")
from asmlib import *

WS_XN = 0
WS_Q = 4 << 20
WS_KV = 8 << 20
WS_A2 = 16 << 20
WS_SIZE = 1 << 28
M16 = "v_mfma_f32_16x16x32_bf16"
M32 = "v_mfma_f32_32x32x16_bf16"
def f2u(x): return struct.unpack("<I", struct.pack("<f", x))[0]

def wave_allsum(a, v, t):
    for m in ("quad_perm:[1,0,3,2]", "quad_perm:[2,3,0,1]", "row_half_mirror", "row_mirror"):
        a("s_nop 1")
        a(f"v_add_f32_dpp v{v}, v{v}, v{v} {m} row_mask:0xf bank_mask:0xf")
    for sw in ("v_permlane16_swap_b32", "v_permlane32_swap_b32"):
        a(f"v_mov_b32 v{t}, v{v}")
        a("s_nop 1")
        a(f"{sw} v{v}, v{t}")
        a("s_nop 1")
        a(f"v_add_f32 v{v}, v{v}, v{t}")

def rnd_bf16(a, v):
    a(f"v_cvt_pk_bf16_f32 v{v}, v{v}, v{v}")
    a(f"v_lshlrev_b32 v{v}, 16, v{v}")

def gen_ln():
    a = A()
    a(khead("ln_kernel"))
    a("s_cmp_ge_u32 s2, 256")
    a("s_cbranch_scc1 L_ln_end")
    a("s_load_dwordx2 s[4:5], s[0:1], 0")
    a("s_load_dwordx2 s[6:7], s[0:1], 72")
    a("v_lshrrev_b32 v1, 6, v0")
    a("v_and_b32 v2, 63, v0")
    a("s_lshl_b32 s3, s2, 3")
    a("v_add_u32 v1, s3, v1")
    a("v_lshlrev_b32 v1, 11, v1")
    a("v_lshl_add_u32 v1, v2, 4, v1")
    a("s_waitcnt lgkmcnt(0)")
    srd(a, 8, 4, 4 << 20)
    srd(a, 12, 6, 4 << 20)
    a("buffer_load_dwordx4 v[4:7], v1, s[8:11], 0 offen")
    a("buffer_load_dwordx4 v[8:11], v1, s[8:11], 0 offen offset:1024")
    a("s_mov_b32 s16, 0xffff0000")
    a("s_waitcnt vmcnt(0)")
    for i in range(8):
        a(f"v_lshlrev_b32 v{16+2*i}, 16, v{4+i}")
        a(f"v_and_b32 v{17+2*i}, s16, v{4+i}")
    for i in range(8): a(f"v_add_f32 v{32+i}, v{16+2*i}, v{17+2*i}")
    for i in range(4): a(f"v_add_f32 v{32+i}, v{32+i}, v{36+i}")
    a("v_add_f32 v32, v32, v34\nv_add_f32 v33, v33, v35\nv_add_f32 v12, v32, v33")
    wave_allsum(a, 12, 13)
    a(f"v_mul_f32 v12, {hex(f2u(1/1024))}, v12")
    for i in range(16): a(f"v_sub_f32 v{32+i}, v{16+i}, v12")
    for i in range(4): a(f"v_mul_f32 v{48+i}, v{32+i}, v{32+i}")
    for i in range(4, 16): a(f"v_fmac_f32 v{48+i%4}, v{32+i}, v{32+i}")
    a("v_add_f32 v48, v48, v49\nv_add_f32 v50, v50, v51\nv_add_f32 v14, v48, v50")
    wave_allsum(a, 14, 13)
    a(f"v_mul_f32 v14, {hex(f2u(1/1024))}, v14")
    rnd_bf16(a, 14)
    rnd_bf16(a, 12)
    a(f"v_add_f32 v14, {hex(f2u(1e-5))}, v14")
    rnd_bf16(a, 14)
    a("v_sqrt_f32 v14, v14\ns_nop 0")
    rnd_bf16(a, 14)
    a("v_rcp_f32 v14, v14")
    for i in range(16): a(f"v_sub_f32 v{32+i}, v{16+i}, v12")
    for i in range(8): a(f"v_cvt_pk_bf16_f32 v{4+i}, v{32+2*i}, v{33+2*i}")
    for i in range(8):
        a(f"v_lshlrev_b32 v{16+2*i}, 16, v{4+i}")
        a(f"v_and_b32 v{17+2*i}, s16, v{4+i}")
    for i in range(16): a(f"v_mul_f32 v{16+i}, v{16+i}, v14")
    for i in range(8): a(f"v_cvt_pk_bf16_f32 v{4+i}, v{16+2*i}, v{17+2*i}")
    a("buffer_store_dwordx4 v[4:7], v1, s[12:15], 0 offen")
    a("buffer_store_dwordx4 v[8:11], v1, s[12:15], 0 offen offset:1024")
    a.label("L_ln_end")
    a("s_endpgm")
    return a.text(), kd("ln_kernel", 64, 64)

LX = [0, 32768]
LW = [65536, 65536 + 40960]
G1_LDS = 65536 + 2 * 40960
XF, WF, ACV = 64, 128, 192
def acc1(nb, mb):
    return ("a", (nb * 8 + mb) * 4) if nb < 8 else ("v", ACV + ((nb - 8) * 8 + mb) * 4)
S_X, S_W, S_WS = 8, 12, 32
S_XO = 36
S_H6, S_H7, S_I6, S_I7 = 43, 44, 45, 46
S_WV, S_CNT = 47, 48

def g1_dma_list(typ, st):
    L = []
    for u in range(5):
        s6 = (u == 0) or (typ == "B" and u in (1, 2))
        for jj in range(2):
            so = "0" if jj == 0 else f"s{S_H6 if s6 else S_H7}"
            L.append((f"s_add_u32 m0, s{S_WV}, {LW[st] + u*8192 + jj*4096}",
                      f"buffer_load_dwordx4 v{9 if s6 else 10}, s[{S_W+4*u}:{S_W+4*u+3}], {so} offen lds"))
    for j in range(8):
        so = "0" if j == 0 else f"s{S_XO+j-1}"
        L.append((f"s_add_u32 m0, s{S_WV}, {LX[st] + j*4096}",
                  f"buffer_load_dwordx4 v8, s[{S_X}:{S_X+3}], {so} offen lds"))
    return L
def g1_adv():
    return ["v_add_u32 v8, 0x80, v8", f"v_add_u32 v9, s{S_I6}, v9", f"v_add_u32 v10, s{S_I7}, v10"]
def g1_wread(st, nb, slot):
    L = []
    for kh in range(2):
        for t in range(2):
            d = WF + slot * 8 + kh * 4 + t * 2
            L.append(Op(f"ds_read_b64_tr_b16 v[{d}:{d+1}], v{4 + st*2 + (nb&1)} offset:{(nb>>1)*8192 + kh*4096 + t*512}", "ds", regs("v", d, 2)))
    return L
def g1_xread(st, mb, kh):
    d = XF + mb * 8 + kh * 4
    return Op(f"ds_read_b128 v[{d}:{d+3}], v{2+kh} offset:{LX[st] + mb*2048}", "ds", regs("v", d, 4))

NTAIL = 4
def g1_step(a, wt, typ, par, head=True, tail=True, nxt=True):
    st = par; ns = par ^ 1
    fill = [[] for _ in range(160)]
    base = par * 10
    for nb in range(8):
        for i, op in enumerate(g1_wread(st, nb + 2, (base + nb + 2) % 4)):
            fill[16 * nb + (i if nb == 7 else 4 * i)].append(op)
    if head:
        for i, (m, d) in enumerate(g1_dma_list(typ, ns)[NTAIL:]):
            fill[4 * i + 1].append(Op(m)); fill[4 * i + 2].append(Op(d, "vm", {"nextstage"}))
        for i, t in enumerate(g1_adv()): fill[90 + 4 * i].append(Op(t))
    if nxt:
        fill[127].append("BAR")
        for i, op in enumerate(g1_wread(ns, 0, (base + 10) % 4) + g1_wread(ns, 1, (base + 11) % 4)):
            fill[128 + 2 * i].append(op)
        for mb in range(8):
            for kh in range(2):
                fill[144 + 2 * mb + kh].append(g1_xread(ns, mb, kh))
    if tail:
        for i, (m, d) in enumerate(g1_dma_list(typ, st)[:NTAIL]):
            fill[128 + 4 * i].append(Op(m)); fill[129 + 4 * i].append(Op(d, "vm", {"nextstage"}))
    idx = 0
    for nb in range(10):
        slot = (base + nb) % 4
        swp = typ == "B" and nb in (2, 3, 4, 5)
        for mb in range(8):
            for kh in range(2):
                p, c = acc1(nb, mb)
                w = WF + slot * 8 + kh * 4; x = XF + mb * 8 + kh * 4
                A_, B_ = (x, w) if swp else (w, x)
                wt.emit(a, Op(f"{M16} {vr(c,4,p)}, {vr(A_,4)}, {vr(B_,4)}, {vr(c,4,p)}", r=regs("v", w, 4) | regs("v", x, 4)))
                for f in fill[idx]:
                    if f == "BAR":
                        wt.drain(a); a("s_barrier")
                    else: wt.emit(a, f)
                idx += 1

def g1_epi(a, typ):
    T = 16
    def getacc(nb, mb, d):
        p, c = acc1(nb, mb)
        if p == "v": return c
        for r in range(4): a(f"v_accvgpr_read_b32 v{d+r}, a{c+r}")
        return d
    cnt = [0]
    def pack_store(srcs, so, off):
        o = 160 + 4 * (cnt[0] % 8); cnt[0] += 1
        for i in range(4): a(f"v_cvt_pk_bf16_f32 v{o+i}, v{srcs[2*i]}, v{srcs[2*i+1]}")
        a(f"buffer_store_dwordx4 v[{o}:{o+3}], v11, s[{S_WS}:{S_WS+3}], {so} offen offset:{off}")
    for mb in range(8):
        b0 = getacc(0, mb, T); b1 = getacc(1, mb, T + 4)
        for r in range(8): a(f"v_mul_f32 v{T+r}, s52, v{T+r}")
        pack_store([T + r for r in range(8)], "s50", (mb & 1) * 1024)
        if mb & 1: a("s_add_u32 s50, s50, s51")
    def pair(ug, sb):
        for mb in range(8):
            g0 = getacc(2*ug, mb, T); g1 = getacc(2*ug+1, mb, T + 4)
            u0 = getacc(2*ug+2, mb, T + 8); u1 = getacc(2*ug+3, mb, T + 12)
            for r in range(4):
                a(f"v_mul_f32 v{T+r}, v{g0+r}, v{u0+r}")
                a(f"v_mul_f32 v{T+4+r}, v{g1+r}, v{u1+r}")
            pack_store([T + r for r in range(8)], f"s{sb}", (mb & 3) * 1024)
            if mb == 3: a(f"s_add_u32 s{sb}, s{sb}, 4096")
    if typ == "A":
        pair(1, 53)
    else:
        for u in (1, 2):
            for p in range(4):
                for nbi in range(2):
                    getacc(2*u + nbi, 2*p, T); getacc(2*u + nbi, 2*p + 1, T + 4)
                    pack_store([T + r for r in range(8)], f"s{54+u}", 2048 + nbi * 1024)
                a(f"s_add_u32 s{54+u}, s{54+u}, 4096")
    pair(3, 54)

def gen_g1():
    a = A()
    a(khead("g1_kernel"))
    a("s_cmp_ge_u32 s2, 256")
    a("s_cbranch_scc1 L_g1_end")
    stamp(a, 0)
    a("s_load_dwordx2 s[60:61], s[0:1], 8")
    a("s_load_dwordx4 s[64:67], s[0:1], 32")
    a("s_load_dwordx2 s[62:63], s[0:1], 72")
    a("v_lshrrev_b32 v1, 6, v0")
    a("v_and_b32 v0, 63, v0")
    a("s_and_b32 s70, s2, 7")
    a("v_readfirstlane_b32 s71, v1")
    a("s_lshr_b32 s72, s2, 3")
    a("s_lshr_b32 s73, s72, 3")
    a("s_and_b32 s72, s72, 7")
    a("s_lshr_b32 s74, s71, 1")
    a("s_and_b32 s75, s71, 1")
    a(f"s_lshl_b32 s{S_WV}, s71, 10")
    for j in range(1, 8): a(f"s_mov_b32 s{S_XO+j-1}, {j*65536}")
    a(f"s_mov_b32 s{S_H6}, {32*6144}\ns_mov_b32 s{S_H7}, {32*7168}\ns_mov_b32 s{S_I6}, {64*6144}\ns_mov_b32 s{S_I7}, {64*7168}")
    a("s_lshr_b32 s76, s73, 1\ns_lshl_b32 s76, s76, 4\ns_lshl_b32 s77, s70, 1\ns_add_u32 s76, s76, s77\ns_and_b32 s77, s73, 1\ns_add_u32 s76, s76, s77")
    a("s_mul_i32 s78, s70, 7\ns_lshl_b32 s77, s73, 1\ns_add_u32 s78, s78, s77")
    a("v_lshrrev_b32 v12, 3, v0")
    a("s_lshl_b32 s79, s71, 3")
    a("v_add_u32 v12, s79, v12")
    a("v_and_b32 v13, 7, v0")
    a("v_bfe_u32 v14, v12, 1, 3")
    a("v_xor_b32 v14, v14, v13")
    a("v_lshlrev_b32 v14, 4, v14")
    a("s_lshl_b32 s79, s72, 8")
    a("v_add_u32 v15, s79, v12")
    a("v_lshl_add_u32 v8, v15, 11, v14")
    a("v_bfe_u32 v14, v12, 1, 1")
    a("v_bfe_u32 v15, v12, 3, 1")
    a("v_lshl_add_u32 v14, v15, 1, v14")
    a("v_lshlrev_b32 v14, 1, v14")
    a("v_xor_b32 v14, v14, v13")
    a("v_lshlrev_b32 v14, 4, v14")
    a("s_movk_i32 s79, 6144\nv_mad_u32_u24 v9, v12, s79, v14")
    a("s_movk_i32 s79, 7168\nv_mad_u32_u24 v10, v12, s79, v14")
    a("v_and_b32 v12, 15, v0\nv_lshrrev_b32 v13, 4, v0")
    a("v_lshrrev_b32 v14, 1, v12\nv_xor_b32 v14, v14, v13\nv_lshlrev_b32 v14, 4, v14")
    a("v_lshl_add_u32 v14, v12, 7, v14")
    a("s_lshl_b32 s79, s74, 14")
    a("v_add_u32 v2, s79, v14\nv_xor_b32 v3, 64, v2")
    a("v_bfe_u32 v12, v0, 2, 2")
    a("v_lshl_add_u32 v14, v13, 3, v12")
    a("v_lshlrev_b32 v14, 7, v14")
    a("v_lshrrev_b32 v12, 1, v12\nv_and_b32 v15, 1, v13\nv_lshl_add_u32 v12, v15, 1, v12")
    a("s_lshl_b32 s79, s75, 1\nv_xor_b32 v12, s79, v12")
    a("v_lshl_add_u32 v14, v12, 5, v14")
    a("v_and_b32 v12, 3, v0\nv_lshl_add_u32 v14, v12, 3, v14")
    a(f"v_add_u32 v4, {LW[0]}, v14\nv_xor_b32 v5, 32, v4\nv_add_u32 v6, {LW[1]}, v14\nv_xor_b32 v7, 32, v6")
    a("v_lshlrev_b32 v11, 4, v0")
    a("s_waitcnt lgkmcnt(0)")
    srd(a, S_X, 62, 4 << 20)
    srd(a, S_WS, 62, WS_SIZE)
    def wsrd(u, base, total, soff):
        srd(a, S_W + 4*u, base, 0, f"s{soff}")
        a(f"s_sub_u32 s{S_W+4*u+2}, {total}, s{soff}")
    a("s_lshl_b32 s79, s76, 7"); wsrd(0, 60, 6 << 20, 79)
    a("s_lshl_b32 s80, s72, 1\ns_add_u32 s80, s80, s74")
    a("s_and_b32 s81, s76, 15\ns_lshl_b32 s81, s81, 1\ns_add_u32 s81, s81, s75")
    a(f"s_lshl_b32 s82, s81, 17\ns_lshl_b32 s83, s80, 13\ns_add_u32 s82, s82, s83\ns_add_u32 s82, s82, {WS_Q}")
    a(f"s_lshl_b32 s84, s81, 18\ns_lshl_b32 s83, s80, 14\ns_add_u32 s84, s84, s83\ns_add_u32 s84, s84, {WS_KV}")
    a("s_cmp_lt_u32 s76, 16")
    a("s_cselect_b32 s50, s82, s84")
    a("s_movk_i32 s83, 4096\ns_cselect_b32 s51, 2048, s83")
    a(f"s_cselect_b32 s52, {hex(f2u(math.log2(math.e) * 32 ** -0.5))}, 1.0")
    a(f"s_mul_i32 s83, s80, 144\ns_lshl_b32 s85, s78, 1\ns_add_u32 s83, s83, s85\ns_add_u32 s83, s83, s75\ns_lshl_b32 s83, s83, 13\ns_add_u32 s53, s83, {WS_A2}")
    a("s_lshl_b32 s79, s78, 7")
    a("s_cmp_eq_u32 s73, 3")
    a("s_cbranch_scc1 L_g1_B")
    for typ in ("A", "B"):
        a.label(f"L_g1_{typ}")
        if typ == "A":
            wsrd(1, 64, 7 << 20, 79); wsrd(2, 66, 7 << 20, 79)
            a("s_add_u32 s79, s79, 128")
            wsrd(3, 64, 7 << 20, 79); wsrd(4, 66, 7 << 20, 79)
            a("s_add_u32 s54, s53, 16384")
        else:
            wsrd(3, 64, 7 << 20, 79); wsrd(4, 66, 7 << 20, 79)
            a("s_mov_b32 s54, s53")
            a("s_lshl_b32 s79, s70, 8\ns_add_u32 s79, s79, 4096"); wsrd(1, 60, 6 << 20, 79)
            a("s_add_u32 s79, s79, 128"); wsrd(2, 60, 6 << 20, 79)
            a(f"s_lshl_b32 s83, s70, 2\ns_add_u32 s83, s83, s75\ns_lshl_b32 s83, s83, 18\ns_lshl_b32 s85, s80, 14\ns_add_u32 s83, s83, s85\ns_add_u32 s55, s83, {WS_KV}")
            a(f"s_add_u32 s56, s55, {2 << 18}")
        for m, d in g1_dma_list(typ, 0): a(m); a("s_nop 0"); a(d)
        for t in g1_adv(): a(t)
        for m, d in g1_dma_list(typ, 1)[:NTAIL]: a(m); a("s_nop 0"); a(d)
        for i in range(256): a(f"v_accvgpr_write_b32 a{i}, 0")
        for i in range(ACV, 256): a(f"v_mov_b32 v{i}, 0")
        stamp(a, 1)
        a(f"s_waitcnt vmcnt({NTAIL})\ns_barrier")
        stamp(a, 2)
        wt = Waits()
        for op in g1_wread(0, 0, 0) + g1_wread(0, 1, 1) + [g1_xread(0, mb, kh) for mb in range(8) for kh in range(2)]:
            wt.emit(a, op)
        a(f"s_mov_b32 s{S_CNT}, 7")
        a(".p2align 6")
        a.label(f"L_g1_loop{typ}")
        g1_step(a, wt, typ, 0); g1_step(a, wt, typ, 1)
        a(f"s_sub_u32 s{S_CNT}, s{S_CNT}, 1\ns_cmp_lg_u32 s{S_CNT}, 0\ns_cbranch_scc1 L_g1_loop{typ}")
        g1_step(a, wt, typ, 0, tail=False)
        g1_step(a, wt, typ, 1, head=False, tail=False, nxt=False)
        a("s_nop 7")
        stamp(a, 3)
        g1_epi(a, typ)
        stamp(a, 4)
        if STAMP: a("s_waitcnt vmcnt(0)")
        stamp(a, 5)
        stamp_out(a, 1, S_WS, 71, 16)
        a("s_endpgm")
    a.label("L_g1_end")
    a("s_endpgm")
    return a.text(), kd("g1_kernel", 512, 256)

NAME = "parallel_sum__mha_block__glu_gated_bilinear__prompt"
def header():
    L = open(f"cdna_kernels/{NAME}.s.ref").read().split("\n")
    return "\n".join(x for x in L[:11]) + "\n"

def build(parts):
    s = header()
    for n, g, b, lds, _ in parts:
        s += f"; @launch kernel={n} grid=({g},1,1) block=({b},1,1) lds={lds}\n"
    s += '.amdgcn_target "amdgcn-amd-amdhsa--gfx950"\n.text\n'
    for p in parts: s += p[4][0]
    s += '.section .rodata,"a"\n'
    for p in parts: s += ".p2align 6\n" + p[4][1]
    return s

if __name__ == "__main__":
    parts = [("ln_kernel", 256, 512, 0, gen_ln()), ("g1_kernel", 256, 256, G1_LDS, gen_g1())]
    try:
        from att import gen_att, ATT_LDS
        parts.append(("att_kernel", 256, 256, ATT_LDS, gen_att()))
        from g2 import gen_g2, G2_LDS
        parts.append(("g2_kernel", 256, 256, G2_LDS, gen_g2()))
    except ImportError as e:
        print("missing", e)
    out = sys.argv[1] if len(sys.argv) > 1 else f"cdna_kernels/{NAME}.s"
    open(out, "w").write(build(parts))
```
